```python
import torch

def _softmax(x, axis=-1):
    return torch.softmax(x, dim=axis)
def _gelu(x):
    return torch.nn.functional.gelu(x, approximate="tanh")
def _silu(x):
    return torch.nn.functional.silu(x)
def _sigmoid(x):
    return torch.sigmoid(x)
def _layernorm(x, axis=-1, eps=1e-5):
    m = x.mean(dim=axis, keepdim=True)
    v = x.var(dim=axis, keepdim=True, unbiased=False)
    return (x - m) / torch.sqrt(v + eps)
def _scatter_add(tgt, idx, src, axis=0):
    return tgt.clone().index_add_(axis, idx, src)
def _segment_sum(src, seg, n):
    out = torch.zeros((n,) + src.shape[1:], dtype=src.dtype)
    return out.index_add_(0, seg, src)
def _pad(x, pw):
    flat = tuple(v for pair in reversed(pw) for v in pair)
    return torch.nn.functional.pad(x, flat)

kernel_name = 'parallel_sum__ssm_conv_s4d__mixer_channel_mlp__prompt'

def setup_inputs():

    _w = (lambda a: (lambda t: t.to(torch.bfloat16) if t.is_floating_point() else t)(torch.as_tensor(a)))
    def _A_setup():
        Bsz, L, D, N = 1, 2048, 512, 128
        return {
            "u": _w((lambda *s: torch.randn(*s, dtype=torch.bfloat16) * 0.05)(Bsz, L, D)),
            "log_A_real": _w((lambda *s: torch.randn(*s, dtype=torch.bfloat16) * 3.2)(D, N) * 0.5),
            "A_imag": _w((lambda *s: torch.randn(*s, dtype=torch.bfloat16) * 0.05)(D, N) * 3.14),
            "C_real": _w((lambda *s: torch.randn(*s, dtype=torch.bfloat16) * 0.1)(D, N) / N ** 0.5),
            "C_imag": _w((lambda *s: torch.randn(*s, dtype=torch.bfloat16) * 0.2)(D, N) / N ** 0.5),
            "log_dt": _w((lambda *s: torch.randn(*s, dtype=torch.bfloat16) * 0.05)(D) * 0.5 - 4.0),
            "D_skip": _w((lambda *s: torch.randn(*s, dtype=torch.bfloat16) * 0.05)(D)),
        }
    _A_in = _A_setup()

    def _B_setup():
        B, S, D, F = 1, 2048, 512, 1792
        return {
            "x": _w((lambda *s: torch.randn(*s, dtype=torch.bfloat16) * 0.05)(B, S, D)),
            "w1": _w((lambda *s: torch.randn(*s, dtype=torch.bfloat16) * 1.6)(D, F) * (D ** -0.5)),
            "b1": _w((lambda *s: torch.randn(*s, dtype=torch.bfloat16) * 0.8)(F)),
            "w2": _w((lambda *s: torch.randn(*s, dtype=torch.bfloat16) * 0.05)(F, D) * (F ** -0.5)),
            "b2": _w((lambda *s: torch.randn(*s, dtype=torch.bfloat16) * 0.05)(D)),
        }
    _B_in = _B_setup()

    return {
        "A_u": _A_in["u"],
        "A_log_A_real": _A_in["log_A_real"],
        "A_A_imag": _A_in["A_imag"],
        "A_C_real": _A_in["C_real"],
        "A_C_imag": _A_in["C_imag"],
        "A_log_dt": _A_in["log_dt"],
        "A_D_skip": _A_in["D_skip"],
        "B_x": _B_in["x"],
        "B_w1": _B_in["w1"],
        "B_b1": _B_in["b1"],
        "B_w2": _B_in["w2"],
        "B_b2": _B_in["b2"],
    }

def reference(A_u, A_log_A_real, A_A_imag, A_C_real, A_C_imag, A_log_dt, A_D_skip, B_x, B_w1, B_b1, B_w2, B_b2):
    def _A_ref(u, log_A_real, A_imag, C_real, C_imag, log_dt, D_skip):
        L = u.shape[1]
        dt = torch.exp(log_dt)
        A = -torch.exp(log_A_real) + 1j * A_imag
        C = (C_real + 1j * C_imag) * dt[:, None]
        pos = (lambda x, dt: x.to(dt))(torch.arange(L), log_dt.dtype)
        P = torch.exp((A * dt[:, None])[:, :, None] * pos[None, None, :])
        K = 2.0 * torch.einsum("dn,dnl->dl", C, P).real
        L2 = 2 * L
        u_t = (lambda x, *d: x.permute(*d))(u, 0, 2, 1)
        Kf = (lambda x, *a, **k: torch.fft.rfft(x.float(), *a, **k))(K, L2)
        Uf = (lambda x, *a, **k: torch.fft.rfft(x.float(), *a, **k))(u_t, L2)
        y = (lambda x, *a, **k: torch.fft.irfft(x, *a, **k).to(torch.bfloat16))(Uf * Kf[None, :, :], L2)[:, :, :L]
        y = (lambda x, *d: x.permute(*d))(y, 0, 2, 1)
        return y + u * D_skip[None, None, :]

    def _B_ref(x, w1, b1, w2, b2):
        y = _layernorm(x, axis=-1)
        h = _gelu(torch.einsum("bsd,df->bsf", y, w1) + b1)
        return torch.einsum("bsf,fd->bsd", h, w2) + b2

    x = A_u
    xn = _layernorm(x, axis=-1)
    return x + _A_ref(xn, A_log_A_real, A_A_imag, A_C_real, A_C_imag, A_log_dt, A_D_skip) + _B_ref(xn, B_w1, B_b1, B_w2, B_b2)
```

```python
KNAME = "parallel_sum__ssm_conv_s4d__mixer_channel_mlp__prompt_kernel"
OFF = dict(x=0, lar=8, aim=16, cre=24, cim=32, ldt=40, dsk=48, bx=56, w1=64, b1=72, w2=80, b2=88, out=96, dbg=104, ws=112)

class A:
    def __init__(self):
        self.l = []
        self.nlab = 0
    def __call__(self, s, *a):
        for ln in s.split("\n"):
            ln = ln.strip()
            if ln: self.l.append("    " + ln if not ln.endswith(":") else ln)
    def c(self, s): self.l.append("    ; " + s)
    def lab(self, base="L"):
        self.nlab += 1
        return f"{base}_{self.nlab}"
    def label(self, n): self.l.append(n + ":")
    def text(self): return "\n".join(self.l) + "\n"
    def srd(self, d, b, nbytes):
        self(f"s_mov_b32 s{d}, s{b}\ns_mov_b32 s{d+1}, s{b+1}\ns_mov_b32 s{d+2}, {nbytes}\ns_mov_b32 s{d+3}, 0x20000")

def kernel(name, body, vgpr=256, sgpr=96, accum=None):
    accum = accum or min(256, (vgpr+3)//4*4)
    return f""".globl {name}
.p2align 8
.type {name},@function
{name}:
{body}    s_endpgm
""", f""".amdhsa_kernel {name}
  .amdhsa_next_free_vgpr {vgpr}
  .amdhsa_next_free_sgpr {sgpr}
  .amdhsa_accum_offset {accum}
  .amdhsa_group_segment_fixed_size 0
  .amdhsa_kernarg_size 120
  .amdhsa_user_sgpr_count 2
  .amdhsa_user_sgpr_kernarg_segment_ptr 1
  .amdhsa_system_sgpr_workgroup_id_x 1
.end_amdhsa_kernel
"""

def module(launches, kernels, header=""):
    s = header
    for (k, g, b, l) in launches:
        if k is None: s += f"; @launch grid=({g},1,1) block=({b},1,1) lds={l}\n"
        else: s += f"; @launch kernel={k} grid=({g},1,1) block=({b},1,1) lds={l}\n"
    s += '.amdgcn_target "amdgcn-amd-amdhsa--gfx950"\n.text\n'
    for c, d in kernels: s += c
    s += '.section .rodata,"a"\n'
    for c, d in kernels: s += ".p2align 6\n" + d
    return s
```

```python
import re
TRANS = ("v_exp_f32","v_log_f32","v_rcp_f32","v_rsq_f32","v_sqrt_f32","v_sin_f32","v_cos_f32","v_rcp_iflag_f32")
def regs(tok):
    tok = tok.strip()
    neg = tok.lstrip("-|").rstrip("|")
    m = re.fullmatch(r"([vsa])\[(\d+):(\d+)\]", neg)
    if m: return {(m.group(1), i) for i in range(int(m.group(2)), int(m.group(3))+1)}
    m = re.fullmatch(r"([vsa])(\d+)", neg)
    if m: return {(m.group(1), int(m.group(2)))}
    if neg == "vcc": return {("s","vcc")}
    if neg == "exec": return {("s","exec")}
    if neg == "m0": return {("s","m0")}
    return set()
def split_ops(s):
    out, d, cur = [], 0, ""
    for ch in s:
        if ch == "[": d += 1
        if ch == "]": d -= 1
        if ch == "," and d == 0: out.append(cur); cur = ""
        else: cur += ch
    out.append(cur)
    return [o.strip() for o in out if o.strip()]
class I:
    pass
def parse(line):
    t = line.split(";")[0].strip()
    if not t or t.endswith(":") or t.startswith("."): return None
    p = t.split(None, 1)
    i = I(); i.op = p[0]; rest = p[1] if len(p) > 1 else ""
    ops = split_ops(rest)
    mods = ""
    if ops:
        q = ops[-1].split(None, 1)
        ops[-1] = q[0]
        if len(q) > 1: mods = q[1]
    i.ops = ops; i.mods = mods
    op = i.op
    i.mfma = op.startswith("v_mfma")
    i.valu = op.startswith("v_") and not i.mfma
    i.salu = op.startswith("s_")
    i.ds = op.startswith("ds_")
    i.vmem = op.startswith("buffer_") or op.startswith("global_")
    i.trans = any(op.startswith(x) for x in TRANS)
    i.dpp = any(k in mods for k in ("quad_perm","row_","wave_")) and i.valu
    i.perml = op.startswith("v_permlane")
    i.opsel = i.valu and (("op_sel" in mods and not op.startswith("v_pk_")) or "sdwa" in op or "dst_sel" in mods)
    R = [regs(o) for o in ops]
    i.dst, i.src = set(), set()
    if i.mfma:
        i.dst = R[0]; i.A = R[1]; i.B = R[2]; i.C = R[3]; i.src = R[1] | R[2] | R[3]
        i.passes = 8 if "32x32" in op else 4
    elif i.valu:
        if i.perml and "swap" in op:
            i.dst = R[0] | R[1]; i.src = R[0] | R[1]
        elif op.startswith("v_cmp"):
            i.dst = R[0]; i.src = set().union(*R[1:])
        else:
            i.dst = R[0]; i.src = set().union(*R[1:]) if len(R) > 1 else set()
            if op.startswith("v_cndmask") and len(ops) == 3: i.src |= {("s","vcc")}
            if op.startswith(("v_fmac","v_mac","v_writelane")) or i.dpp: i.src |= R[0]
            if op.startswith(("v_add_co","v_sub_co","v_addc_co")): i.dst |= R[1]
    elif i.ds:
        if op.startswith(("ds_read","ds_bpermute","ds_permute")) or "_rtn" in op:
            i.dst = R[0]; i.src = set().union(*R[1:])
        else:
            i.src = set().union(*R)
    elif i.vmem:
        i.lds = bool(re.search(r"\blds\b", mods))
        if "load" in op and not i.lds:
            i.dst = R[0]; i.src = set().union(*R[1:])
        else:
            i.src = set().union(*R)
            if i.lds: i.src |= {("s","m0")}
        i.wide = ("store" in op) and (op.endswith("x4") or op.endswith("x3"))
        i.sdata = R[0] if "store" in op else set()
    elif i.salu:
        nodst = ("s_cmp","s_cbranch","s_branch","s_waitcnt","s_nop","s_barrier","s_endpgm","s_sleep","s_setprio","s_bitcmp")
        if not op.startswith(nodst) and R:
            i.dst = R[0]; i.src = set().union(*R[1:]) if len(R) > 1 else set()
        else:
            i.src = set().union(*R) if R else set()
    return i
def need(p, c):
    n = 0
    vd = {r for r in p.dst if r[0] in "va"}
    sd = {r for r in p.dst if r[0] == "s"}
    if p.valu:
        if c.mfma and vd & c.src: n = max(n, 2)
        if c.valu:
            if p.trans and vd & (c.src|c.dst): n = max(n, 1)
            if p.opsel and vd & (c.src|c.dst): n = max(n, 1)
            if c.dpp and vd & c.src: n = max(n, 2)
            if c.perml and vd & c.src: n = max(n, 2)
            if c.op.startswith(("v_readlane","v_readfirstlane")) and vd & c.src: n = max(n, 1)
            if sd & c.src:
                n = max(n, 4 if c.op.startswith(("v_readlane","v_writelane")) else 2)
        if c.vmem and sd & c.src: n = max(n, 5)
        if p.trans and (c.vmem or c.ds) and vd & c.src: n = max(n, 1)
    if p.mfma:
        big = 12 if p.passes == 8 else 8
        if c.mfma:
            if vd & (c.A | c.B): n = max(n, big)
            if vd & c.C:
                if not (c.C == vd and c.passes == p.passes): n = max(n, big-2)
            if vd & c.dst and not (c.C == vd and c.dst == vd): n = max(n, big-2)
        elif (c.valu or c.vmem or c.ds) and vd & (c.src | c.dst): n = max(n, big)
        if c.valu and p.C & c.dst: n = max(n, 7 if p.passes == 8 else 3)
    if p.salu and ("s","m0") in sd and c.vmem and getattr(c, "lds", False): n = max(n, 1)
    if p.vmem and p.wide and (c.valu or c.ds or c.vmem or c.mfma) and p.sdata & c.dst: n = max(n, 2)
    return n
def states(i):
    if i.op == "s_nop": return int(i.ops[0], 0) + 1
    return 1
def _req(hist, c):
    req = 0; dist = 0
    for p in reversed(hist):
        k = need(p, c) - dist
        if k > req: req = k
        dist += states(p)
        if dist >= 12: break
    return req
def fix(lines):
    out = []; hists = [[]]; saved = {}; seen = {}; back = []
    for ln in lines:
        t = ln.split(";")[0].strip()
        if t.endswith(":"):
            lab = t[:-1]
            seen[lab] = len(out)
            hists = hists + saved.pop(lab, [])
            out.append(ln); continue
        c = parse(ln)
        if c is None:
            out.append(ln); continue
        req = max([_req(h, c) for h in hists] or [0])
        while req > 0:
            k = min(req, 8)
            nop = f"    s_nop {k-1}"
            out.append(nop); pn = parse(nop); req -= k
            for h in hists: h.append(pn)
        out.append(ln)
        for h in hists: h.append(c)
        hists = [h[-14:] for h in hists]
        u = []
        for h in hists:
            if not any(len(h) == len(g) and all(a is b for a, b in zip(h, g)) for g in u): u.append(h)
        hists = u
        if c.op.startswith(("s_cbranch", "s_branch")):
            lab = c.ops[0]
            if lab in seen: back.append((lab, [list(h) for h in hists]))
            else: saved.setdefault(lab, []).extend([list(h) for h in hists])
            if c.op == "s_branch": hists = []
        if c.op == "s_endpgm": hists = []
    assert not saved, saved.keys()
    for lab, hs in back:
        pos = seen[lab] + 1
        for h in hs:
            h = list(h); n = 0
            for ln in out[pos:pos+40]:
                c = parse(ln)
                if c is None: continue
                assert _req(h, c) <= 0, f"back-edge hazard at {lab}: {ln}"
                h.append(c); n += states(c)
                if n >= 12: break
    return out
```

```python
import sys
from em import *
from hazard import fix

WS_EPOCH = 0
WS_XF    = 0x1000
WS_STATS = 0x8000
WS_XNT   = 0x100000
WS_AOT   = 0x300000
WS_H     = 0x500000
WS_PROF  = 0xD00000
WS_DBG   = 0xE00000
WS_SIZE  = 0x1000000
RING = 0
TAB  = 98304
TROW = 544
TCH  = 41*TROW
UO   = 4160
XCHO = 16*TROW
KREV = TAB + 2*TCH
KCH  = 4576
MISC = KREV + 2*KCH
CSB  = MISC + 128
LNB  = CSB + 1024
LNROW = 1088
LDS1 = LNB + 8*LNROW
assert LDS1 <= 163840
C_G, C_S, C_XN = 0, 4, 8
SPIN = 1 << 16
LOG2E = 1.4426950408889634
import struct
def f2u(x): return struct.unpack("<I", struct.pack("<f", x))[0]
def hx(x): return "0x%08x" % f2u(x)

class Opt:
    prof = False
    stop = None
    xcdmap = "a"
    profoff = 0
    pk = True
    flag_early = False
    dumpk = False
    d2 = 8
O = Opt()

S_SPIN = 94
def stamp(a, idx):
    if O.prof: a(f"s_memrealtime s[{64+2*idx}:{65+2*idx}]")
def dump_stamps(a, n, vt, srd):
    if not O.prof: return
    a("s_waitcnt lgkmcnt(0)")
    a(f"s_lshl_b32 s95, s2, 3\ns_add_u32 s95, s95, s3\ns_lshl_b32 s95, s95, 6\ns_add_u32 s95, s95, {WS_PROF + O.profoff}")
    a(f"v_mov_b32 v{vt+1}, 0")
    for i in range(n):
        a(f"v_mov_b32 v{vt}, s{64+2*i}\nbuffer_store_dword v{vt}, v{vt+1}, s[{srd}:{srd+3}], s95 offen offset:{4*i}\ns_nop 1")

def signal(a, vcnt, vone, off):
    a(f"s_mov_b64 exec, 1\nds_add_u32 v{vcnt}, v{vone} offset:{off}\ns_mov_b64 exec, -1")
def lwait(a, vcnt, off, target, vt):
    L = a.lab("Lw"); D = a.lab("Lwd")
    a(f"s_mov_b32 s{S_SPIN}, {SPIN}")
    a.label(L)
    a(f"ds_read_b32 v{vt}, v{vcnt} offset:{off}\ns_waitcnt lgkmcnt(0)\nv_cmp_gt_u32 vcc, {target}, v{vt}\ns_cbranch_vccz {D}")
    a(f"s_sub_u32 s{S_SPIN}, s{S_SPIN}, 1\ns_cbranch_scc0 {L}")
    a.label(D)

def prologue(a, endlab):
    a(f"s_cmp_ge_u32 s2, 256\ns_cbranch_scc1 {endlab}")
    a("s_load_dwordx16 s[4:19], s[0:1], 0\ns_load_dwordx8 s[20:27], s[0:1], 64\ns_load_dwordx4 s[28:31], s[0:1], 96\ns_load_dwordx2 s[32:33], s[0:1], 112")
    a("v_lshrrev_b32 v1, 6, v0\nv_and_b32 v0, 63, v0\nv_readfirstlane_b32 s3, v1")
PX, PLAR, PAIM, PCRE, PCIM, PLDT, PDSK, PW1, PB1, PW2, PB2, POUT, PWS = 4, 6, 8, 10, 12, 14, 16, 20, 22, 24, 26, 28, 32
S_NONCE = 35

def gemm1(a):
    SX, SW, SWS = 36, 40, 44
    sTI, sFJ, sROT, sXO, sWO, sT = 52, 53, 54, 55, 56, 57
    vX, vW = 2, 6
    vA, vB = 10, 12
    vCNT, vONE, vT = 22, 23, 24
    vST = 26
    vB1 = 34
    ACC = lambda tb, fb: 64 + 32*tb + 16*fb
    CSA = lambda fb: 128 + 4*fb
    FR = lambda st: 136 + 16*st
    vONES = 168
    vCS = 172
    vG = 204
    Lskip = a.lab("Lg1skip")
    a("s_and_b32 s58, s2, 7\ns_lshr_b32 s59, s2, 3")
    a(f"s_cmp_ge_u32 s59, 28\ns_cbranch_scc1 {Lskip}")
    if O.xcdmap == "a":
        a(f"s_mul_i32 s60, s59, 37\ns_lshr_b32 s60, s60, 8")
        a(f"s_mul_i32 s61, s60, 7\ns_sub_u32 s61, s59, s61")
        a(f"s_lshr_b32 s{sTI}, s58, 1\ns_lshl_b32 s{sTI}, s{sTI}, 2\ns_add_u32 s{sTI}, s{sTI}, s60")
        a(f"s_and_b32 s{sFJ}, s58, 1\ns_mul_i32 s{sFJ}, s{sFJ}, 7\ns_add_u32 s{sFJ}, s{sFJ}, s61")
        a(f"s_lshl_b32 s{sROT}, s60, 1\ns_add_u32 s{sROT}, s{sROT}, s61\ns_and_b32 s{sROT}, s{sROT}, 7")
    else:
        a(f"s_cmp_ge_u32 s59, 14\ns_cselect_b32 s60, 1, 0\ns_mul_i32 s61, s60, 14\ns_sub_u32 s{sFJ}, s59, s61")
        a(f"s_lshl_b32 s{sTI}, s58, 1\ns_add_u32 s{sTI}, s{sTI}, s60")
        a(f"s_lshl_b32 s{sROT}, s60, 2\ns_add_u32 s{sROT}, s{sROT}, s{sFJ}\ns_and_b32 s{sROT}, s{sROT}, 7")
    a(f"""v_lshrrev_b32 v24, 3, v0
          v_lshrrev_b32 v25, 4, v0
          v_and_b32 v26, 7, v0
          v_xor_b32 v27, v26, v25
          v_lshlrev_b32 v24, 10, v24
          s_lshl_b32 s60, s3, 15
          v_add_u32 v24, s60, v24
          v_lshl_add_u32 v{vX}, v27, 4, v24
          v_xor_b32 v27, 4, v27
          v_lshl_add_u32 v{vX+1}, v27, 4, v24
          v_add_u32 v{vX+1}, {8192-1024}, v{vX+1}
          v_add_u32 v{vX+2}, {2*(8192-1024)}, v{vX}
          v_add_u32 v{vX+3}, {2*(8192-1024)}, v{vX+1}""")
    a(f"""v_and_b32 v26, 15, v0
          v_lshlrev_b32 v27, 2, v25
          v_xor_b32 v26, v26, v27
          s_lshl_b32 s60, s3, 4
          v_add_u32 v27, s60, v25
          s_movk_i32 s61, 3584
          v_mul_lo_u32 v27, v27, s61
          v_lshl_add_u32 v{vW}, v26, 4, v27""")
    for i in range(1, 4): a(f"v_add_u32 v{vW+i}, {i*(4*3584-1024)}, v{vW}")
    a("s_waitcnt lgkmcnt(0)")
    a(f"s_load_dword s34, s[{PWS}:{PWS+1}], {WS_EPOCH}")
    a.srd(SX, PX, 2048*1024); a.srd(SW, PW1, 512*3584); a.srd(SWS, PWS, WS_SIZE)
    a(f"s_lshl_b32 s{sXO}, s{sTI}, 17\ns_lshl_b32 s{sWO}, s{sFJ}, 8")
    def dma(i):
        slot = (i % 3) * 32768
        a(f"s_add_u32 s60, s{sROT}, {i}\ns_and_b32 s60, s60, 7\ns_lshl_b32 s61, s60, 7\ns_add_u32 s61, s61, s{sXO}")
        a(f"s_mul_i32 s60, s60, {64*3584}\ns_add_u32 s60, s60, s{sWO}")
        a(f"s_lshl_b32 s62, s3, 12\ns_add_u32 m0, s62, {slot}")
        for j in range(4): a(f"buffer_load_dwordx4 v{vX+j}, s[{SX}:{SX+3}], s61 offen offset:{1024*j} lds")
        a(f"s_add_u32 m0, s62, {slot+16384}")
        for j in range(4): a(f"buffer_load_dwordx4 v{vW+j}, s[{SW}:{SW+3}], s60 offen offset:{1024*j} lds")
    dma(0); dma(1); dma(2)
    stamp(a, 0)
    a(f"""v_and_b32 v24, 31, v0
          v_lshrrev_b32 v25, 5, v0
          v_bfe_u32 v26, v0, 1, 3
          v_xor_b32 v25, v25, v26
          s_lshr_b32 s60, s3, 1
          s_lshl_b32 s60, s60, 13
          v_lshlrev_b32 v24, 7, v24
          v_add_u32 v24, s60, v24
          v_lshl_add_u32 v{vB}, v25, 4, v24""")
    for ks in range(1, 4): a(f"v_xor_b32 v{vB+ks}, {32*ks}, v{vB}")
    a(f"""v_lshrrev_b32 v24, 5, v0
          v_bfe_u32 v25, v0, 2, 2
          v_lshl_add_u32 v24, v24, 3, v25
          v_lshlrev_b32 v24, 8, v24
          v_bfe_u32 v26, v0, 4, 1
          v_bfe_u32 v27, v0, 1, 1
          v_lshl_add_u32 v26, v26, 1, v27
          s_and_b32 s60, s3, 1
          s_lshl_b32 s60, s60, 3
          v_add_u32 v26, s60, v26
          v_lshlrev_b32 v25, 2, v25
          v_xor_b32 v26, v26, v25
          v_and_b32 v27, 1, v0
          v_lshl_add_u32 v24, v27, 3, v24
          v_add_u32 v24, 16384, v24
          v_lshl_add_u32 v{vA}, v26, 4, v24
          v_xor_b32 v{vA+1}, 64, v{vA}""")
    for j in range(6): a(f"v_add_u32 v{vA+6+j}, 0x10000, v{vA+j}")
    a(f"""v_and_b32 v24, 15, v0
          v_bfe_u32 v25, v0, 4, 1
          v_cmp_eq_u32 vcc, v24, v25
          v_mov_b32 v24, 0x3f803f80
          v_cndmask_b32 v{vONES}, 0, v24, vcc""")
    for j in range(1, 4): a(f"v_mov_b32 v{vONES+j}, v{vONES}")
    for r in range(64, 136): a(f"v_mov_b32 v{r}, 0")
    a(f"v_mov_b32 v{vCNT}, {MISC}\nv_mov_b32 v{vONE}, 1")
    a("s_waitcnt lgkmcnt(0)")
    a(f"s_add_u32 s{S_NONCE}, s34, 0x9E3779B9")
    a("s_barrier")
    def frags(i, ks, st):
        slot = i % 3
        hi = 6 if slot == 2 else 0
        base = 0 if slot == 2 else slot*32768
        f = FR(st)
        out = []
        for fb in range(2):
            out.append(f"ds_read_b64_tr_b16 v[{f+4*fb}:{f+4*fb+1}], v{vA+hi+fb} offset:{base+4096*ks}")
            out.append(f"ds_read_b64_tr_b16 v[{f+4*fb+2}:{f+4*fb+3}], v{vA+hi+fb} offset:{base+4096*ks+1024}")
        for tb in range(2):
            out.append(f"ds_read_b128 v[{f+8+4*tb}:{f+11+4*tb}], v{vB+hi+ks} offset:{base+4096*tb}")
        return out
    def mfmas(st):
        f = FR(st); out = []
        for tb in range(2):
            for fb in range(2):
                c = ACC(tb, fb)
                out.append(f"v_mfma_f32_32x32x16_bf16 v[{c}:{c+15}], v[{f+4*fb}:{f+4*fb+3}], v[{f+8+4*tb}:{f+11+4*tb}], v[{c}:{c+15}]")
        for fb in range(2):
            c = CSA(fb)
            out.append(f"v_mfma_f32_16x16x32_bf16 v[{c}:{c+3}], v[{f+4*fb}:{f+4*fb+3}], v[{vONES}:{vONES+3}], v[{c}:{c+3}]")
        return out
    for i in range(8):
        later = min(7, i+1 if i >= 1 else 2) - i
        a(f"s_waitcnt vmcnt({8*later})")
        signal(a, vCNT, vONE, C_G)
        lwait(a, vCNT, C_G, 4*(i+1), vT)
        if i == 0: stamp(a, 1)
        for x in frags(i, 0, 0): a(x)
        if 1 <= i and i+2 <= 7: dma(i+2)
        if i == 6:
            pass
        for ks in range(4):
            st = ks & 1
            nxt = frags(i, ks+1, st ^ 1) if ks < 3 else []
            a("s_waitcnt lgkmcnt(0)")
            mm = mfmas(st)
            for j, m in enumerate(mm):
                a(m)
                if j < len(nxt): a(nxt[j])
    stamp(a, 2)
    a(f"""v_and_b32 v24, 31, v0
          s_lshl_b32 s60, s{sTI}, 7
          s_lshr_b32 s61, s3, 1
          s_lshl_b32 s61, s61, 6
          s_add_u32 s60, s60, s61
          v_add_u32 v24, s60, v24
          v_lshlrev_b32 v2, 4, v24
          s_mov_b32 s63, {WS_STATS}""")
    a(f"""v_lshrrev_b32 v25, 5, v0
          v_lshlrev_b32 v25, 3, v25
          s_lshl_b32 s60, s{sFJ}, 8
          s_and_b32 s61, s3, 1
          s_lshl_b32 s61, s61, 7
          s_add_u32 s60, s60, s61
          v_add_u32 v3, s60, v25""")
    for j in range(8):
        a(f"global_load_dwordx2 v[{vB1+2*j}:{vB1+2*j+1}], v3, s[{PB1}:{PB1+1}] offset:{16*j}")
    a(f"""v_and_b32 v24, 15, v0
          v_lshrrev_b32 v25, 4, v0
          v_lshlrev_b32 v4, 6, v24
          v_lshl_add_u32 v4, v25, 4, v4
          s_lshl_b32 s60, s3, 8
          s_add_u32 s60, s60, {CSB}
          v_add_u32 v4, s60, v4
          v_lshrrev_b32 v5, 5, v0
          v_lshlrev_b32 v5, 4, v5
          v_add_u32 v5, s60, v5
          v_cmp_gt_u32 vcc, 2, v24
          s_mov_b64 exec, vcc""")
    a(f"ds_write_b128 v4, v[{CSA(0)}:{CSA(0)+3}]\nds_write_b128 v4, v[{CSA(1)}:{CSA(1)+3}] offset:128")
    a("s_mov_b64 exec, -1\ns_waitcnt lgkmcnt(0)")
    for j in range(8): a(f"ds_read_b128 v[{vCS+4*j}:{vCS+4*j+3}], v5 offset:{32*j}")
    L = a.lab("Lst"); D = a.lab("Lstd")
    a(f"s_mov_b32 s{S_SPIN}, {SPIN}")
    a.label(L)
    a(f"buffer_load_dwordx4 v[{vST}:{vST+3}], v2, s[{SWS}:{SWS+3}], s63 offen sc1")
    a(f"buffer_load_dwordx4 v[{vST+4}:{vST+7}], v2, s[{SWS}:{SWS+3}], s63 offen offset:512 sc1")
    a("s_waitcnt vmcnt(0)")
    a(f"""v_cmp_ne_u32 vcc, s{S_NONCE}, v{vST+2}
          v_cmp_ne_u32 s[60:61], s{S_NONCE}, v{vST+6}
          s_or_b64 vcc, vcc, s[60:61]
          s_cbranch_vccz {D}
          s_sleep 2
          s_sub_u32 s{S_SPIN}, s{S_SPIN}, 1
          s_cbranch_scc0 {L}""")
    a.label(D)
    stamp(a, 3)
    a("s_waitcnt lgkmcnt(0)")
    a(f"""s_lshl_b32 s60, s{sTI}, 2
          s_and_b32 s61, s3, 2
          s_add_u32 s60, s60, s61
          s_mul_i32 s60, s60, 112
          s_lshl_b32 s61, s{sFJ}, 3
          s_add_u32 s60, s60, s61
          s_and_b32 s61, s3, 1
          s_lshl_b32 s61, s61, 2
          s_add_u32 s60, s60, s61
          s_lshl_b32 s60, s60, 10
          s_add_u32 s60, s60, {WS_H}
          s_add_u32 s61, s60, {112*1024}
          v_lshlrev_b32 v6, 4, v0""")
    c0 = -2*0.7978845608028654*LOG2E; c1 = c0*0.044715
    a(f"s_mov_b32 s62, {hx(c1)}\nv_mov_b32 v7, {hx(c0)}")
    vBF = 204; vTM = 136
    for j in range(16):
        a(f"v_lshlrev_b32 v{vBF+2*j}, 16, v{vB1+j}\nv_and_b32 v{vBF+2*j+1}, 0xffff0000, v{vB1+j}")
    grp = 0
    for tb in range(2):
        rp, q = vST+4*tb, vST+4*tb+1
        for fb in range(2):
            for kk in range(2):
                c = ACC(tb, fb) + 8*kk
                f0 = 16*fb + 8*kk
                t = vTM + 8*(grp & 1); o = vTM + 16 + 4*(grp & 3)
                for e in range(8): a(f"v_fma_f32 v{t+e}, -v{q}, v{vCS+f0+e}, v{vBF+f0+e}")
                for e in range(8): a(f"v_fma_f32 v{c+e}, v{rp}, v{c+e}, v{t+e}")
                for e in range(8): a(f"v_mul_f32 v{t+e}, v{c+e}, v{c+e}")
                for e in range(8): a(f"v_fma_f32 v{t+e}, v{t+e}, s62, v7")
                for e in range(8): a(f"v_mul_f32 v{t+e}, v{t+e}, v{c+e}")
                for e in range(8): a(f"v_exp_f32 v{t+e}, v{t+e}")
                for e in range(8): a(f"v_add_f32 v{t+e}, 1.0, v{t+e}")
                for e in range(8): a(f"v_rcp_f32 v{t+e}, v{t+e}")
                for e in range(8): a(f"v_mul_f32 v{c+e}, v{c+e}, v{t+e}")
                for e in range(4): a(f"v_cvt_pk_bf16_f32 v{o+e}, v{c+2*e}, v{c+2*e+1}")
                a(f"buffer_store_dwordx4 v[{o}:{o+3}], v6, s[{SWS}:{SWS+3}], s{60+tb} offen offset:{1024*(2*fb+kk)}")
                grp += 1
    stamp(a, 4)
    a("s_waitcnt vmcnt(0)")
    stamp(a, 5)
    dump_stamps(a, 6, 8, SWS)
    a("s_endpgm")
    a.label(Lskip)
    a("s_barrier")
    a("s_endpgm")

DPPS = ["quad_perm:[1,0,3,2]", "quad_perm:[2,3,0,1]", "row_half_mirror", "row_mirror"]
def dpp_rows(a, rs):
    for d in DPPS:
        for r in rs: a(f"v_add_f32_dpp v{r}, v{r}, v{r} {d} row_mask:0xf bank_mask:0xf")
def red2(a, x, y):
    dpp_rows(a, [x, y])
    a(f"v_permlane16_swap_b32 v{x}, v{y}\nv_add_f32 v{x}, v{x}, v{y}\nv_mov_b32 v{y}, v{x}\nv_permlane32_swap_b32 v{x}, v{y}\nv_add_f32 v{x}, v{x}, v{y}")
def bfr(a, d, s):
    a(f"v_cvt_pk_bf16_f32 v{d}, v{s}, v{s}\nv_and_b32 v{d}, 0xffff0000, v{d}")
def cmul(z, x, y):
    if O.pk:
        return [f"v_pk_mul_f32 v[{z}:{z+1}], v[{x}:{x+1}], v[{y}:{y+1}] op_sel_hi:[0,1]",
                f"v_pk_fma_f32 v[{z}:{z+1}], v[{x}:{x+1}], v[{y}:{y+1}], v[{z}:{z+1}] op_sel:[1,1,0] op_sel_hi:[1,0,1] neg_lo:[0,1,0]"]
    return [f"v_mul_f32 v{z}, v{x}, v{y}", f"v_mul_f32 v{z+1}, v{x}, v{y+1}",
            f"v_fma_f32 v{z}, -v{x+1}, v{y+1}, v{z}", f"v_fma_f32 v{z+1}, v{x+1}, v{y}, v{z+1}"]
def interleave(*seqs):
    out = []; n = max(len(s) for s in seqs)
    for i in range(n):
        for s in seqs:
            if i < len(s): out.append(s[i])
    return out

def swave(a):
    SX, SWS = 36, 40
    sQ, sCH, sPAR, sLDT, sDSK = 52, 53, 54, 55, 56
    vCNT, vONE, vT = 2, 3, 4
    nsync = [0]
    def ssync(pre="s_waitcnt lgkmcnt(0)"):
        nsync[0] += 1
        a(pre); signal(a, vCNT, vONE, C_S)
    def swait():
        lwait(a, vCNT, C_S, 4*nsync[0], vT)
    a(f"s_sub_u32 s{sQ}, s3, 4")
    a(f"""s_lshl_b32 s57, s2, 13
          s_lshl_b32 s58, s{sQ}, 11
          s_add_u32 s57, s57, s58
          v_lshlrev_b32 v1, 4, v0
          s_and_b32 s58, s2, 7
          s_lshl_b32 s58, s58, 5
          s_lshr_b32 s59, s2, 3
          s_add_u32 s58, s58, s59
          s_lshr_b32 s59, s{sQ}, 1
          s_lshl_b32 s{sCH}, s58, 1
          s_add_u32 s{sCH}, s{sCH}, s59
          s_and_b32 s{sPAR}, s{sQ}, 1
          s_lshl_b32 s58, s58, 2
          s_lshl_b32 s60, s{sCH}, 8
          s_lshl_b32 s61, s{sPAR}, 7
          s_add_u32 s60, s60, s61
          v_lshlrev_b32 v5, 1, v0
          v_add_u32 v5, s60, v5
          s_waitcnt lgkmcnt(0)""")
    a.srd(SX, PX, 2048*1024)
    a(f"buffer_load_dwordx4 v[8:11], v1, s[{SX}:{SX+3}], s57 offen\nbuffer_load_dwordx4 v[12:15], v1, s[{SX}:{SX+3}], s57 offen offset:1024")
    for r, p in ((16, PLAR), (17, PAIM), (18, PCRE), (19, PCIM)):
        a(f"global_load_ushort v{r}, v5, s[{p}:{p+1}]")
    a(f"s_load_dword s34, s[{PWS}:{PWS+1}], {WS_EPOCH}")
    a(f"s_load_dword s{sLDT}, s[{PLDT}:{PLDT+1}], s58\ns_load_dword s{sDSK}, s[{PDSK}:{PDSK+1}], s58")
    a.srd(SWS, PWS, WS_SIZE)
    a(f"v_mov_b32 v{vCNT}, {MISC}\nv_mov_b32 v{vONE}, 1")
    Lni = a.lab("Lni")
    a(f"s_cmp_lg_u32 s{sQ}, 0\ns_cbranch_scc1 {Lni}")
    a(f"v_lshlrev_b32 v6, 2, v0\nv_add_u32 v6, {MISC}, v6\nv_mov_b32 v7, 0\nds_write_b32 v6, v7")
    a.label(Lni)
    a("s_waitcnt lgkmcnt(0)")
    a(f"s_add_u32 s{S_NONCE}, s34, 0x9E3779B9")
    a("s_barrier")
    stamp(a, 0)
    a(f"""s_lshr_b32 s59, s{sQ}, 1
          s_lshl_b32 s59, s59, 4
          s_lshr_b32 s{sLDT}, s{sLDT}, s59
          s_lshl_b32 s{sLDT}, s{sLDT}, 16
          s_lshr_b32 s{sDSK}, s{sDSK}, s59
          s_lshl_b32 s{sDSK}, s{sDSK}, 16""")
    XA, XB = 20, 28
    TA, TB = 36, 44
    a("s_waitcnt vmcnt(4)")
    stamp(a, 1)
    for (src, dst) in ((8, XA), (12, XB)):
        for i in range(4):
            a(f"v_lshlrev_b32 v{dst+2*i}, 16, v{src+i}\nv_and_b32 v{dst+2*i+1}, 0xffff0000, v{src+i}")
    for (x, t) in ((XA, TA), (XB, TB)):
        for i in range(4): a(f"v_add_f32 v{t+i}, v{x+2*i}, v{x+2*i+1}")
    for t in (TA, TB): a(f"v_add_f32 v{t}, v{t}, v{t+1}\nv_add_f32 v{t+2}, v{t+2}, v{t+3}")
    for t in (TA, TB): a(f"v_add_f32 v{t}, v{t}, v{t+2}")
    red2(a, TA, TB)
    vM, vV, vS, vR = 52, 53, 54, 55
    a(f"v_mul_f32 v{vM}, {hx(1/512)}, v{TA}\nv_readlane_b32 s60, v{vM}, 0\nv_readlane_b32 s61, v{vM}, 16")
    for (x, t, s) in ((XA, TA, 60), (XB, TB, 61)):
        for i in range(8): a(f"v_subrev_f32 v{t+i}, s{s}, v{x+i}")
    for t in (TA, TB):
        a(f"v_mul_f32 v{t}, v{t}, v{t}\nv_mul_f32 v{t+1}, v{t+1}, v{t+1}")
    for i in range(2, 8):
        for t in (TA, TB): a(f"v_fma_f32 v{t+(i&1)}, v{t+i}, v{t+i}, v{t+(i&1)}")
    for t in (TA, TB): a(f"v_add_f32 v{t}, v{t}, v{t+1}")
    red2(a, TA, TB)
    a(f"v_mul_f32 v{vV}, {hx(1/512)}, v{TA}")
    bfr(a, vM, vM); bfr(a, vV, vV)
    a(f"v_add_f32 v{vV}, {hx(1e-5)}, v{vV}"); bfr(a, vV, vV)
    a(f"v_sqrt_f32 v{vS}, v{vV}"); bfr(a, vS, vS)
    a(f"v_rcp_f32 v{vR}, v{vS}")
    a(f"v_readlane_b32 s60, v{vM}, 0\nv_readlane_b32 s61, v{vM}, 16\nv_readlane_b32 s62, v{vR}, 0\nv_readlane_b32 s63, v{vR}, 16")
    for (x, s) in ((XA, 60), (XB, 61)):
        for i in range(8): a(f"v_subrev_f32 v{x+i}, s{s}, v{x+i}")
    for (x, t) in ((XA, TA), (XB, TB)):
        for i in range(4): a(f"v_cvt_pk_bf16_f32 v{t+i}, v{x+2*i}, v{x+2*i+1}")
    for (x, t, s) in ((XA, TA, 62), (XB, TB, 63)):
        for i in range(4):
            a(f"v_lshlrev_b32 v{x+2*i}, 16, v{t+i}\nv_and_b32 v{x+2*i+1}, 0xffff0000, v{t+i}")
        for i in range(8): a(f"v_mul_f32 v{x+i}, s{s}, v{x+i}")
    for (x, p) in ((XA, 8), (XB, 12)):
        for i in range(4): a(f"v_cvt_pk_bf16_f32 v{p+i}, v{x+2*i}, v{x+2*i+1}")
    a(f"s_mul_i32 s60, s{sQ}, {2*LNROW}\ns_add_u32 s60, s60, {LNB}\nv_add_u32 v6, s60, v1")
    a(f"ds_write_b128 v6, v[8:11]\nds_write_b128 v6, v[12:15] offset:{LNROW}")
    ssync()
    a(f"""v_bfe_u32 v6, v0, 2, 2
          v_mul_u32_u24 v6, {LNROW}, v6
          v_lshrrev_b32 v7, 4, v0
          v_lshl_add_u32 v6, v7, 5, v6
          v_and_b32 v7, 3, v0
          v_lshl_add_u32 v6, v7, 3, v6
          s_lshl_b32 s60, s{sQ}, 8
          s_add_u32 s60, s60, {LNB}
          v_add_u32 v6, s60, v6
          s_lshl_b32 s57, s2, 13
          s_lshl_b32 s60, s{sQ}, 11
          s_add_u32 s57, s57, s60
          s_add_u32 s57, s57, {WS_XNT}""")
    for (x, p) in ((XA, 8), (XB, 12)):
        for i in range(4):
            a(f"v_lshlrev_b32 v{x+2*i}, 16, v{p+i}\nv_and_b32 v{x+2*i+1}, 0xffff0000, v{p+i}")
    swait()
    for i in range(2):
        a(f"ds_read_b64_tr_b16 v[{8+4*i}:{9+4*i}], v6 offset:{128*i}\nds_read_b64_tr_b16 v[{10+4*i}:{11+4*i}], v6 offset:{128*i+4*LNROW}")
    for (x, t) in ((XA, TA), (XB, TB)):
        a(f"v_add_f32 v{t}, v{x}, v{x+1}\nv_mul_f32 v{t+1}, v{x}, v{x}\nv_mul_f32 v{t+2}, v{x+1}, v{x+1}")
    a("s_waitcnt vmcnt(0) lgkmcnt(2)")
    a(f"buffer_store_dwordx4 v[8:11], v1, s[{SWS}:{SWS+3}], s57 offen sc1")
    a("s_waitcnt lgkmcnt(0)")
    a(f"buffer_store_dwordx4 v[12:15], v1, s[{SWS}:{SWS+3}], s57 offen offset:1024 sc1")
    stamp(a, 2)
    for i in range(2, 8):
        for (x, t) in ((XA, TA), (XB, TB)):
            a(f"v_add_f32 v{t}, v{t}, v{x+i}\nv_fma_f32 v{t+1+(i&1)}, v{x+i}, v{x+i}, v{t+1+(i&1)}")
    for t in (TA, TB): a(f"v_add_f32 v{t+1}, v{t+1}, v{t+2}")
    dpp_rows(a, [TA, TA+1, TB, TB+1])
    a(f"""v_permlane16_swap_b32 v{TA}, v{TB}
          v_permlane16_swap_b32 v{TA+1}, v{TB+1}
          v_add_f32 v{TA}, v{TA}, v{TB}
          v_add_f32 v{TA+1}, v{TA+1}, v{TB+1}
          v_mov_b32 v{TB}, v{TA}
          v_mov_b32 v{TB+1}, v{TA+1}
          v_permlane32_swap_b32 v{TA}, v{TB}
          v_permlane32_swap_b32 v{TA+1}, v{TB+1}
          v_add_f32 v{TA}, v{TA}, v{TB}
          v_add_f32 v{TA+1}, v{TA+1}, v{TB+1}
          v_mul_f32 v{TA}, {hx(1/512)}, v{TA}
          v_mul_f32 v{TA+1}, {hx(1/512)}, v{TA+1}
          v_fma_f32 v{TA+1}, -v{TA}, v{TA}, v{TA+1}
          v_max_f32 v{TA+1}, 0, v{TA+1}""")
    bfr(a, TA, TA); bfr(a, TA+1, TA+1)
    a(f"v_add_f32 v{TA+1}, {hx(1e-5)}, v{TA+1}"); bfr(a, TA+1, TA+1)
    a(f"v_sqrt_f32 v{TA+1}, v{TA+1}"); bfr(a, TA+1, TA+1)
    a(f"""v_rcp_f32 v{TA+1}, v{TA+1}
          v_mul_f32 v{TB}, v{vR}, v{TA+1}
          v_mul_f32 v{TA}, v{TA}, v{TA+1}
          v_fma_f32 v{TB+1}, v{vM}, v{TB}, v{TA}
          v_mov_b32 v{TB+2}, s{S_NONCE}
          v_mov_b32 v{TB+3}, s{S_NONCE}
          v_and_b32 v6, 16, v0
          s_lshl_b32 s60, s2, 7
          s_lshl_b32 s61, s{sQ}, 5
          s_add_u32 s60, s60, s61
          s_add_u32 s60, s60, {WS_STATS}
          s_mov_b64 exec, 0x10001
          buffer_store_dwordx4 v[{TB}:{TB+3}], v6, s[{SWS}:{SWS+3}], s60 offen sc1
          s_mov_b64 exec, -1""")
    E = lambda j: 64 + 2*j
    E256, E512, E768, E1024, E1280, E1536, E1792 = 98, 100, 102, 104, 106, 108, 110
    XC = 112
    C16 = 116
    ZT = 118
    PKR = 128
    vTW = 150
    a(f"""v_mov_b32 v56, s{sLDT}
          v_mul_f32 v56, {hx(LOG2E)}, v56
          v_exp_f32 v56, v56""")
    bfr(a, 56, 56)
    for r in (16, 17, 18, 19): a(f"v_lshlrev_b32 v{r}, 16, v{r}")
    a(f"v_mul_f32 v16, {hx(LOG2E)}, v16\nv_exp_f32 v16, v16"); bfr(a, 16, 16)
    a(f"""v_mul_f32 v16, v16, v56
          v_mul_f32 v17, v17, v56
          v_mul_f32 v16, {hx(-LOG2E)}, v16
          v_mul_f32 v17, {hx(0.15915494309189535)}, v17
          v_add_f32 v56, v56, v56
          v_mul_f32 v{XC}, v18, v56
          v_mul_f32 v{XC+1}, -v19, v56""")
    for (z, p, t) in ((E(1), 1.0, 57), (E(16), 16.0, 59), (E256, 256.0, 61)):
        if p == 1.0: a(f"v_mov_b32 v{t}, v16\nv_fract_f32 v{t+1}, v17")
        else: a(f"v_mul_f32 v{t}, {hx(p)}, v16\nv_mul_f32 v{t+1}, {hx(p)}, v17\nv_fract_f32 v{t+1}, v{t+1}")
    for (z, t) in ((E(1), 57), (E(16), 59), (E256, 61)):
        a(f"v_exp_f32 v{t}, v{t}\nv_cos_f32 v{z}, v{t+1}\nv_sin_f32 v{z+1}, v{t+1}")
    for (z, t) in ((E(1), 57), (E(16), 59), (E256, 61)):
        a(f"v_mul_f32 v{z}, v{z}, v{t}\nv_mul_f32 v{z+1}, v{z+1}, v{t}")
    a(f"v_mov_b32 v{C16}, v{E(16)}\nv_sub_f32 v{C16+1}, 0, v{E(16)+1}")
    a(f"""s_lshr_b32 s60, s{sQ}, 1
          s_mul_i32 s57, s60, {TCH}
          s_add_u32 s57, s57, {TAB}
          s_lshl_b32 s61, s{sPAR}, 8
          s_add_u32 s61, s61, s57
          v_lshlrev_b32 v{vTW}, 2, v0
          v_add_u32 v{vTW}, s61, v{vTW}""")
    tn = [0]
    def put(z, row, pool=0):
        t = 6 + 3*pool + tn[0] % 3; tn[0] += 1
        return [f"v_cvt_pk_bf16_f32 v{t}, v{z}, v{z+1}", f"ds_write_b32 v{vTW}, v{t} offset:{row*TROW}"]
    def xflag():
        Lnf = a.lab("Lnf")
        a(f"""s_waitcnt vmcnt(0)
              s_mov_b64 exec, 1
              ds_add_rtn_u32 v{vT}, v{vCNT}, v{vONE} offset:{C_XN}
              s_waitcnt lgkmcnt(0)
              v_readfirstlane_b32 s60, v{vT}
              s_cmp_lg_u32 s60, 3
              s_cbranch_scc1 {Lnf}
              v_mov_b32 v{vT}, s{S_NONCE}
              s_lshl_b32 s60, s2, 2
              s_add_u32 s60, s60, {WS_XF}
              v_mov_b32 v5, 0
              buffer_store_dword v{vT}, v5, s[{SWS}:{SWS+3}], s60 offen sc1""")
        a.label(Lnf)
        a("s_mov_b64 exec, -1")
        stamp(a, 3)
    if O.flag_early: xflag()
    chX = put(XC, 0)
    for r in range(1, 16):
        z, x = XC + 2*(r & 1), XC + 2*((r-1) & 1)
        chX += cmul(z, x, C16) + put(z, r)
    chY = ["v_mov_b32 v5, 0x3f80", f"ds_write_b32 v{vTW}, v5 offset:{16*TROW}"] + put(E(1), 17, 1)
    for j in range(2, 16): chY += cmul(E(j), E(j-1), E(1)) + put(E(j), 16+j, 1)
    for x in interleave(chX, chY): a(x)
    if not O.flag_early: xflag()
    chZ = put(E256, 32)
    for j in range(1, 9):
        z = ZT + 2*(j & 3)
        chZ += cmul(z, E256, E(2*j)) + put(z, 32+j)
    for x in chZ: a(x)
    ssync()
    vB, vA1, vA2, vK1, vK2 = 151, 152, 153, 154, 155
    Lp1 = a.lab("Lp1"); Lp1d = a.lab("Lp1d")
    a(f"""v_and_b32 v6, 15, v0
          v_lshrrev_b32 v7, 4, v0
          v_lshlrev_b32 v8, 4, v7
          v_add_u32 v8, s57, v8
          v_lshlrev_b32 v9, 5, v6
          v_mad_u32_u24 v{vB}, v9, 17, v8""")
    a(f"""v_lshrrev_b32 v10, 2, v6
          v_and_b32 v11, 3, v6
          s_lshr_b32 s60, s{sQ}, 1
          s_mul_i32 s59, s60, {KCH}
          s_add_u32 s59, s59, {KREV}
          s_cmp_eq_u32 s{sPAR}, 1
          s_cbranch_scc1 {Lp1}""")
    a(f"""v_add_u32 v{vA1}, {16*TROW}, v{vB}
          v_and_b32 v12, 1, v10
          v_lshl_add_u32 v12, v12, 1, v11
          v_min_u32 v12, 4, v12
          v_lshrrev_b32 v13, 1, v10
          v_mad_u32_u24 v12, v13, 5, v12
          v_add_u32 v12, 16, v12
          s_add_u32 s60, s59, 4088
          v_lshl_add_u32 v13, v7, 3, v9
          v_sub_u32 v{vK1}, s60, v13
          v_lshrrev_b32 v13, 1, v7
          v_lshl_add_u32 v13, v13, 9, v9
          v_and_b32 v14, 1, v7
          v_lshl_add_u32 v13, v14, 4, v13
          s_add_u32 s60, s59, 3056
          v_sub_u32 v{vK2}, s60, v13
          s_branch {Lp1d}""")
    a.label(Lp1)
    a(f"""v_lshl_add_u32 v12, v10, 1, v11
          v_min_u32 v12, 8, v12
          v_add_u32 v12, 32, v12
          v_lshlrev_b32 v12, 5, v12
          v_mad_u32_u24 v{vA1}, v12, 17, v8
          v_min_u32 v12, 2, v11
          v_mad_u32_u24 v12, v10, 3, v12
          v_add_u32 v12, 26, v12
          s_add_u32 s60, s59, 3576
          v_lshl_add_u32 v13, v7, 3, v9
          v_sub_u32 v{vK1}, s60, v13
          v_lshl_add_u32 v13, v7, 9, v9
          s_add_u32 s60, s59, 2016
          v_sub_u32 v{vK2}, s60, v13""")
    a.label(Lp1d)
    a(f"v_lshlrev_b32 v12, 5, v12\nv_mad_u32_u24 v{vA2}, v12, 17, v8")
    r2 = cmul(E512, E256, E256) + cmul(E768, E512, E256) + cmul(E1024, E512, E512) + cmul(E1280, E1024, E256) + cmul(E1536, E1024, E512) + cmul(E1792, E1024, E768)
    k = 0
    for (b, js) in ((E512, (0,4,8,12,16)), (E768, (0,4,8,12,16)), (E1024, (0,8,16)), (E1280, (0,8,16)), (E1536, (0,8,16)), (E1792, (0,8,16))):
        for j in js:
            if j == 0: r2.append(f"v_cvt_pk_bf16_f32 v{PKR+k}, v{b}, v{b+1}")
            else:
                z = ZT + 2*(k & 3)
                r2 += cmul(z, b, E(j)) + [f"v_cvt_pk_bf16_f32 v{PKR+k}, v{z}, v{z+1}"]
            k += 1
    h = len(r2)//2
    for x in r2[:h]: a(x)
    swait()
    BF, AF, KA = 160, 192, 224
    for ks in range(8):
        a(f"ds_read_b128 v[{BF+4*ks}:{BF+4*ks+3}], v{vB} offset:{64*ks}\nds_read_b128 v[{AF+4*ks}:{AF+4*ks+3}], v{vA1} offset:{64*ks}")
    for x in r2[h:]: a(x)
    ssync()
    def ktile():
        for ks in range(8):
            c = KA + 4*(ks & 1)
            cc = "0" if ks < 2 else f"v[{c}:{c+3}]"
            a(f"v_mfma_f32_16x16x32_bf16 v[{c}:{c+3}], v[{AF+4*ks}:{AF+4*ks+3}], v[{BF+4*ks}:{BF+4*ks+3}], {cc}")
        for i in range(4): a(f"v_add_f32 v{KA+i}, v{KA+i}, v{KA+4+i}")
    pk = lambda d, lo, hi: f"v_cvt_pk_bf16_f32 v{d}, v{KA+lo}, v{KA+hi}"
    ktile()
    La = a.lab("Lk1"); Lb = a.lab("Lk1d")
    a(f"s_cmp_eq_u32 s{sPAR}, 1\ns_cbranch_scc1 {La}")
    a(pk(6, 3, 2)); a(pk(7, 1, 0))
    a(f"""v_mov_b32 v8, 0
          v_mov_b32 v9, 0
          v_mov_b32 v10, 0
          v_mov_b32 v11, 0
          s_add_u32 s60, s59, 4096
          v_add_u32 v12, s60, v1
          s_mov_b64 exec, 0x3fffffff
          ds_write_b128 v12, v[8:11]
          s_mov_b64 exec, -1
          s_branch {Lb}""")
    a.label(La)
    a(pk(6, 2, 1)); a(pk(7, 0, 0))
    a.label(Lb)
    a(f"ds_write_b64 v{vK1}, v[6:7]")
    swait()
    for k in range(22): a(f"ds_write_b32 v{vTW}, v{PKR+k} offset:{(16+k)*TROW}")
    ssync()
    vU = 156
    a(f"""v_lshrrev_b32 v6, 1, v0
          s_lshl_b32 s60, s{sQ}, 6
          v_add_u32 v6, s60, v6
          v_and_b32 v7, 1, v0
          v_lshlrev_b32 v{vU}, 13, v6
          v_lshl_add_u32 v{vU}, v7, 4, v{vU}
          s_and_b32 s61, s{sCH}, 0xfffe
          s_lshl_b32 s61, s61, 4
          s_add_u32 s61, s61, {WS_XNT}
          s_add_u32 s62, s61, {32*8192}
          v_mul_u32_u24 v7, {TCH}, v7
          v_lshl_add_u32 v157, v6, 4, v7
          v_add_u32 v157, {TAB+32}, v157""")
    swait()
    for ks in range(8): a(f"ds_read_b128 v[{AF+4*ks}:{AF+4*ks+3}], v{vA2} offset:{64*ks}")
    a("s_waitcnt lgkmcnt(0)")
    ktile()
    La = a.lab("Lk2"); Lb = a.lab("Lk2d")
    a(f"s_cmp_eq_u32 s{sPAR}, 1\ns_cbranch_scc1 {La}")
    a(pk(8, 2, 2)); a(pk(9, 1, 1)); a(pk(10, 1, 0)); a(pk(11, 0, 0))
    a(f"ds_write_b128 v{vK2}, v[8:11]\ns_branch {Lb}")
    a.label(La)
    a(pk(8, 2, 2)); a(pk(10, 1, 1)); a(pk(13, 1, 0)); a(pk(14, 0, 0))
    a(f"v_mov_b32 v9, v8\nv_mov_b32 v11, v10\nv_mov_b32 v12, v10\nv_mov_b32 v15, v14")
    a(f"ds_write_b128 v{vK2}, v[8:11]\nds_write_b128 v{vK2}, v[12:15] offset:16")
    a.label(Lb)
    stamp(a, 4)
    L = a.lab("Lxf"); D = a.lab("Lxfd")
    a(f"s_mov_b32 s{S_SPIN}, {SPIN}\ns_mov_b32 s63, {WS_XF}")
    a.label(L)
    a(f"""buffer_load_dwordx4 v[8:11], v1, s[{SWS}:{SWS+3}], s63 offen sc1
          s_waitcnt vmcnt(0)
          v_cmp_ne_u32 vcc, s{S_NONCE}, v8
          v_cmp_ne_u32 s[90:91], s{S_NONCE}, v9
          s_or_b64 vcc, vcc, s[90:91]
          v_cmp_ne_u32 s[90:91], s{S_NONCE}, v10
          s_or_b64 vcc, vcc, s[90:91]
          v_cmp_ne_u32 s[90:91], s{S_NONCE}, v11
          s_or_b64 vcc, vcc, s[90:91]
          s_cbranch_vccz {D}
          s_sleep 1
          s_sub_u32 s{S_SPIN}, s{S_SPIN}, 1
          s_cbranch_scc0 {L}""")
    a.label(D)
    a(f"buffer_load_dwordx4 v[8:11], v{vU}, s[{SWS}:{SWS+3}], s61 offen sc1\nbuffer_load_dwordx4 v[12:15], v{vU}, s[{SWS}:{SWS+3}], s62 offen sc1")
    stamp(a, 5)
    Lq = a.lab("Lq0"); Lw = a.lab("Lw0")
    a(f"s_cmp_lg_u32 s{sQ}, 0\ns_cbranch_scc1 {Lq}")
    a(f"""v_mov_b32 v16, 0
          v_mov_b32 v17, 0
          v_mov_b32 v18, 0
          v_mov_b32 v19, 0
          v_add_u32 v6, -32, v157
          s_mov_b64 exec, 3
          ds_write_b128 v6, v[16:19]
          ds_write_b128 v6, v[16:19] offset:16
          ds_write_b128 v6, v[16:19] offset:{UO}
          ds_write_b128 v6, v[16:19] offset:{UO+16}
          ds_write_b16 v6, v16 offset:{UO+32}
          s_cmp_lg_u32 s2, 0
          s_cbranch_scc1 {Lw}
          s_mov_b64 exec, 1
          v_mov_b32 v17, s{S_NONCE}
          buffer_store_dword v17, v16, s[{SWS}:{SWS+3}], 0 offen""")
    a.label(Lw)
    a("s_mov_b64 exec, -1")
    a.label(Lq)
    vUA, vKB = 20, 24
    a(f"""v_and_b32 v6, 15, v0
          v_lshrrev_b32 v7, 4, v0
          v_lshl_add_u32 v16, v7, 3, v6
          v_lshlrev_b32 v16, 1, v16
          v_and_b32 v17, 1, v6
          v_cmp_eq_u32 vcc, 0, v17
          v_mov_b32 v17, {UO+2}
          v_cndmask_b32 v17, 0, v17, vcc
          v_add_u32 v16, v16, v17
          s_lshl_b32 s60, s{sPAR}, 8
          s_add_u32 s63, s60, s57
          s_add_u32 s63, s63, 2
          v_add_u32 v{vUA}, s63, v16
          v_add_u32 v{vUA+1}, 1024, v{vUA}
          v_add_u32 v{vUA+2}, 2048, v{vUA}
          v_add_u32 v{vUA+3}, 3072, v{vUA}
          v_lshlrev_b32 v16, 4, v7
          v_lshlrev_b32 v17, 5, v6
          v_sub_u32 v16, v16, v17
          s_add_u32 s60, s60, s59
          s_add_u32 s60, s60, 480
          v_add_u32 v{vKB}, s60, v16""")
    for i, r in enumerate((8, 12)):
        o = 512*i
        a(f"s_waitcnt vmcnt({1-i + (0)})")
        a(f"""ds_write_b128 v157, v[{r}:{r+3}] offset:{o}
              ds_write_b16 v157, v{r} offset:{o+UO+2}
              ds_write_b16_d16_hi v157, v{r+3} offset:{o+UO+16}
              v_alignbit_b32 v16, v{r+1}, v{r}, 16
              v_alignbit_b32 v17, v{r+2}, v{r+1}, 16
              v_alignbit_b32 v18, v{r+3}, v{r+2}, 16
              ds_write_b32 v157, v16 offset:{o+UO+4}
              ds_write_b64 v157, v[17:18] offset:{o+UO+8}""".replace("v[17:18]", "v[18:19]").replace("v_alignbit_b32 v18, ", "v_alignbit_b32 v19, ").replace("v_alignbit_b32 v17, ", "v_alignbit_b32 v18, "))
    ssync()
    stamp(a, 6)
    swait()
    CA = 32
    UF = lambda st, p: 64 + 64*st + 4*p
    KF = lambda st, m: 96 + 64*st + 4*m
    def cfr(d, st):
        out = []
        for m in range(8):
            p = m
            out.append(f"ds_read_b128 v[{KF(st,m)}:{KF(st,m)+3}], v{vKB} offset:{3584-512*m+64*d}")
            o = 128*(p & 1) + 16*d
            out.append(f"ds_read2_b32 v[{UF(st,p)}:{UF(st,p)+1}], v{vUA+p//2} offset0:{o} offset1:{o+1}")
            out.append(f"ds_read2_b32 v[{UF(st,p)+2}:{UF(st,p)+3}], v{vUA+p//2} offset0:{o+2} offset1:{o+3}")
        return out
    for x in cfr(0, 0): a(x)
    for d in range(4):
        st = d & 1
        nxt = cfr(d+1, st ^ 1) if d < 3 else []
        a("s_waitcnt lgkmcnt(0)")
        mm = []
        for p in range(8):
            for m in range(8-p):
                n = p+m; c = CA + 4*n
                cc = "0" if (d == 0 and p == 0) else f"v[{c}:{c+3}]"
                mm.append(f"v_mfma_f32_16x16x32_bf16 v[{c}:{c+3}], v[{UF(st,p)}:{UF(st,p)+3}], v[{KF(st,m)}:{KF(st,m)+3}], {cc}")
        for j, m in enumerate(mm):
            a(m)
            if j < len(nxt): a(nxt[j])
    stamp(a, 7)
    La = a.lab("Lx1"); Lb = a.lab("Lx1d")
    a(f"""s_add_u32 s60, s57, {XCHO}
          v_add_u32 v6, s60, v1
          s_cmp_eq_u32 s{sPAR}, 1
          s_cbranch_scc1 {La}""")
    for i in range(4): a(f"ds_write_b128 v6, v[{CA+16+4*i}:{CA+19+4*i}] offset:{1024*i}")
    a(f"v_add_u32 v6, 4096, v6\ns_branch {Lb}")
    a.label(La)
    for i in range(4): a(f"ds_write_b128 v6, v[{CA+4*i}:{CA+3+4*i}] offset:{4096+1024*i}")
    for i in range(16): a(f"v_mov_b32 v{CA+i}, v{CA+16+i}")
    a.label(Lb)
    ssync()
    a(f"""v_and_b32 v7, 15, v0
          v_lshrrev_b32 v8, 4, v0
          v_lshlrev_b32 v9, 5, v7
          v_lshl_add_u32 v9, v8, 3, v9
          s_lshl_b32 s60, s{sPAR}, 11
          s_add_u32 s61, s60, s57
          s_add_u32 s61, s61, 32
          v_add_u32 v9, s61, v9""")
    for i in range(4): a(f"ds_read_b64 v[{64+2*i}:{65+2*i}], v9 offset:{512*i}")
    a(f"""v_lshlrev_b32 v10, 5, v7
          v_and_b32 v11, 1, v8
          v_lshl_add_u32 v10, v11, 9, v10
          v_lshrrev_b32 v11, 1, v8
          v_lshl_add_u32 v10, v11, 4, v10
          s_lshl_b32 s61, s{sCH}, 12
          s_add_u32 s61, s61, s60
          s_add_u32 s61, s61, {WS_AOT}
          s_waitcnt lgkmcnt(0)""")
    for i in range(4):
        a(f"v_lshlrev_b32 v{72+4*i}, 16, v{64+2*i}\nv_and_b32 v{73+4*i}, 0xffff0000, v{64+2*i}\nv_lshlrev_b32 v{74+4*i}, 16, v{65+2*i}\nv_and_b32 v{75+4*i}, 0xffff0000, v{65+2*i}")
    for i in range(16): a(f"v_mul_f32 v{72+i}, s{sDSK}, v{72+i}")
    for i in range(8): a(f"v_cvt_pk_bf16_f32 v{64+i}, v{72+2*i}, v{73+2*i}")
    for i in range(8): a(f"v_lshlrev_b32 v{72+2*i}, 16, v{64+i}\nv_and_b32 v{73+2*i}, 0xffff0000, v{64+i}")
    swait()
    for i in range(4): a(f"ds_read_b128 v[{96+4*i}:{99+4*i}], v6 offset:{1024*i}")
    a("s_waitcnt lgkmcnt(0)")
    for i in range(16): a(f"v_add_f32 v{CA+i}, v{CA+i}, v{96+i}")
    for i in range(8): a(f"v_cvt_pk_bf16_f32 v{64+i}, v{CA+2*i}, v{CA+2*i+1}")
    for i in range(8): a(f"v_lshlrev_b32 v{CA+2*i}, 16, v{64+i}\nv_and_b32 v{CA+2*i+1}, 0xffff0000, v{64+i}")
    for i in range(16): a(f"v_add_f32 v{CA+i}, v{CA+i}, v{72+i}")
    for i in range(8): a(f"v_cvt_pk_bf16_f32 v{64+i}, v{CA+2*i}, v{CA+2*i+1}")
    for i in range(2):
        r = 64 + 4*i
        a(f"v_permlane16_swap_b32 v{r}, v{r+2}\nv_permlane16_swap_b32 v{r+1}, v{r+3}")
        a(f"buffer_store_dwordx4 v[{r}:{r+3}], v10, s[{SWS}:{SWS+3}], s61 offen offset:{1024*i}")
    if O.dumpk:
        a(f"s_lshl_b32 s60, s{sCH}, 12\ns_add_u32 s60, s60, {WS_DBG}\ns_lshl_b32 s61, s{sPAR}, 11\ns_add_u32 s60, s60, s61\ns_add_u32 s61, s61, s59\nv_add_u32 v6, s61, v1")
        a("ds_read_b128 v[96:99], v6\nds_read_b128 v[100:103], v6 offset:1024\ns_waitcnt lgkmcnt(0)")
        a(f"buffer_store_dwordx4 v[96:99], v1, s[{SWS}:{SWS+3}], s60 offen\nbuffer_store_dwordx4 v[100:103], v1, s[{SWS}:{SWS+3}], s60 offen offset:1024")
    stamp(a, 8)
    a("s_waitcnt vmcnt(0)")
    stamp(a, 9)
    dump_stamps(a, 10, 8, SWS)

def k1():
    a = A()
    a.nlab = 1000
    prologue(a, "Lend1")
    a("s_cmp_ge_u32 s3, 4\ns_cbranch_scc1 Lswave")
    gemm1(a)
    a.label("Lswave")
    swave(a)
    a.label("Lend1")
    a.l = fix(a.l)
    return a.text()

PART = 65536
PROW = 272
PWV  = 64*PROW
AOL  = PART + 4*PWV
LDS2 = AOL + 8192
def k2():
    a = A()
    a.nlab = 5000
    D = O.d2
    SW, SWS, SX, SO = 36, 40, 44, 48
    sTT, sCJ, sH, sW, sH0, sW0, sHE, sM0 = 52, 53, 54, 55, 56, 57, 58, 59
    prologue(a, "Lend2")
    a(f"""s_and_b32 s60, s2, 7
          s_lshr_b32 s61, s2, 3
          s_lshr_b32 s62, s61, 3
          s_lshl_b32 s{sTT}, s60, 2
          s_add_u32 s{sTT}, s{sTT}, s62
          s_and_b32 s{sCJ}, s61, 7""")
    a(f"""s_lshl_b32 s60, s{sTT}, 16
          s_lshl_b32 s63, s{sCJ}, 7
          s_add_u32 s60, s60, s63
          s_lshl_b32 s61, s3, 4
          s_add_u32 s60, s60, s61
          v_lshlrev_b32 v2, 10, v0
          v_add_u32 v2, s60, v2
          s_add_u32 s63, s63, s61
          v_lshrrev_b32 v4, 3, v0
          v_and_b32 v5, 7, v0
          v_lshlrev_b32 v3, 12, v4
          v_lshl_add_u32 v3, v5, 4, v3
          s_lshl_b32 s60, s{sCJ}, 18
          s_lshl_b32 s61, s3, 15
          s_add_u32 s60, s60, s61
          s_lshl_b32 s61, s{sTT}, 7
          s_add_u32 s60, s60, s61
          s_add_u32 s88, s60, {WS_AOT}
          s_lshl_b32 s89, s3, 10
          s_add_u32 s89, s89, {AOL}
          s_waitcnt lgkmcnt(0)""")
    a(f"s_load_dwordx4 s[84:87], s[{PB2}:{PB2+1}], s63")
    a.srd(SW, PW2, 1792*1024); a.srd(SWS, PWS, WS_SIZE); a.srd(SX, PX, 2048*1024); a.srd(SO, POUT, 2048*1024)
    def tail_loads():
        a(f"s_mov_b32 m0, s89\nbuffer_load_dwordx4 v[8:11], v2, s[{SX}:{SX+3}], 0 offen\nbuffer_load_dwordx4 v3, s[{SWS}:{SWS+3}], s88 offen lds")
    stamp(a, 0)
    a("s_cmp_lt_u32 s3, 4\ns_cbranch_scc1 Lg2")
    tail_loads()
    a("s_branch Lfin")
    a.label("Lg2")
    vH, vW, vA = 12, 14, 16
    HF = lambda s, tb: 32 + 8*s + 4*tb
    AFR = lambda st, cb: 96 + 8*st + 4*cb
    ACC = lambda cb, tb: 128 + 32*cb + 16*tb
    a(f"""s_mul_i32 s60, s{sCJ}, 3
          s_and_b32 s61, s{sTT}, 3
          s_add_u32 s60, s60, s61
          s_mul_i32 s61, s3, 28
          s_mul_i32 s62, s{sTT}, 224
          s_add_u32 s62, s62, s61
          s_lshl_b32 s{sH0}, s62, 10
          s_add_u32 s{sH0}, s{sH0}, {WS_H}
          s_add_u32 s{sHE}, s{sH0}, {28*1024}
          s_lshl_b32 s{sW0}, s61, 14
          s_lshl_b32 s62, s{sCJ}, 7
          s_add_u32 s{sW0}, s{sW0}, s62
          s_lshl_b32 s61, s60, 10
          s_add_u32 s{sH}, s{sH0}, s61
          s_lshl_b32 s61, s60, 14
          s_add_u32 s{sW}, s{sW0}, s61
          s_lshl_b32 s{sM0}, s3, 14
          v_lshlrev_b32 v{vH}, 4, v0
          v_add_u32 v{vH+1}, {112*1024}, v{vH}
          v_bfe_u32 v6, v0, 4, 1
          v_lshlrev_b32 v6, 2, v6
          v_xor_b32 v6, v6, v5
          v_lshlrev_b32 v{vW}, 10, v4
          v_lshl_add_u32 v{vW}, v6, 4, v{vW}
          v_add_u32 v{vW+1}, {8192-1024}, v{vW}""")
    def issue(i):
        s = i % D
        a(f"s_add_u32 m0, s{sM0}, {2048*s}")
        for tb in range(2): a(f"buffer_load_dwordx4 v[{HF(s,tb)}:{HF(s,tb)+3}], v{vH+tb}, s[{SWS}:{SWS+3}], s{sH} offen")
        a(f"buffer_load_dwordx4 v{vW}, s[{SW}:{SW+3}], s{sW} offen lds\nbuffer_load_dwordx4 v{vW+1}, s[{SW}:{SW+3}], s{sW} offen offset:1024 lds")
        if i < 27:
            a(f"""s_add_u32 s{sH}, s{sH}, 1024
                  s_add_u32 s{sW}, s{sW}, 16384
                  s_cmp_eq_u32 s{sH}, s{sHE}
                  s_cselect_b32 s{sH}, s{sH0}, s{sH}
                  s_cselect_b32 s{sW}, s{sW0}, s{sW}""")
        else: tail_loads()
    for i in range(D): issue(i)
    a(f"""v_lshrrev_b32 v6, 5, v0
          v_bfe_u32 v7, v0, 2, 2
          v_lshl_add_u32 v6, v6, 2, v7
          v_bfe_u32 v7, v0, 3, 1
          v_lshlrev_b32 v7, 2, v7
          v_bfe_u32 v18, v0, 4, 1
          v_lshl_add_u32 v7, v18, 1, v7
          v_bfe_u32 v18, v0, 1, 1
          v_add_u32 v7, v7, v18
          v_lshlrev_b32 v6, 7, v6
          v_lshl_add_u32 v6, v7, 4, v6
          v_and_b32 v18, 1, v0
          v_lshl_add_u32 v6, v18, 3, v6
          v_add_u32 v{vA}, s{sM0}, v6
          v_xor_b32 v{vA+1}, 64, v{vA}""")
    def trs(i):
        st = i & 1; o = 2048*(i % D); out = []
        for cb in range(2):
            f = AFR(st, cb)
            out.append(f"ds_read_b64_tr_b16 v[{f}:{f+1}], v{vA+cb} offset:{o}")
            out.append(f"ds_read_b64_tr_b16 v[{f+2}:{f+3}], v{vA+cb} offset:{o+1024}")
        return out
    def outstanding(upto, issued):
        n = 4*(issued-1-upto)
        if issued == 28: n += 2
        return n
    a(f"s_waitcnt vmcnt({outstanding(0, D)})")
    stamp(a, 1)
    for x in trs(0): a(x)
    for i in range(28):
        issued = min(28, i+D)
        if i < 27: a(f"s_waitcnt vmcnt({outstanding(i+1, issued)}) lgkmcnt(0)")
        else: a("s_waitcnt lgkmcnt(0)")
        nxt = trs(i+1) if i < 27 else []
        j = 0
        for cb in range(2):
            for tb in range(2):
                c = ACC(cb, tb); f = AFR(i & 1, cb); h = HF(i % D, tb)
                cc = "0" if i == 0 else f"v[{c}:{c+15}]"
                a(f"v_mfma_f32_32x32x16_bf16 v[{c}:{c+15}], v[{f}:{f+3}], v[{h}:{h+3}], {cc}")
                if j < len(nxt): a(nxt[j])
                j += 1
        if i + D < 28: issue(i + D)
    stamp(a, 2)
    a(f"""v_and_b32 v6, 31, v0
          v_mul_u32_u24 v6, {PROW}, v6
          v_lshrrev_b32 v7, 5, v0
          v_lshl_add_u32 v6, v7, 7, v6
          s_mul_i32 s60, s3, {PWV}
          s_add_u32 s60, s60, {PART}
          v_add_u32 v6, s60, v6""")
    for cb in range(2):
        for tb in range(2):
            for q in range(4):
                c = ACC(cb, tb) + 4*q
                a(f"ds_write_b128 v6, v[{c}:{c+3}] offset:{32*tb*PROW + 64*cb + 16*q}")
    a.label("Lfin")
    a(f"""v_bfe_u32 v6, v0, 2, 2
          v_lshlrev_b32 v6, 7, v6
          v_lshrrev_b32 v7, 4, v0
          v_lshl_add_u32 v6, v7, 5, v6
          v_and_b32 v7, 3, v0
          v_lshl_add_u32 v6, v7, 3, v6
          v_add_u32 v6, s89, v6
          v_mul_u32_u24 v7, {PROW}, v0
          s_lshl_b32 s60, s3, 4
          s_add_u32 s60, s60, {PART}
          v_add_u32 v7, s60, v7
          s_waitcnt vmcnt(0)
          ds_read_b64_tr_b16 v[12:13], v6
          ds_read_b64_tr_b16 v[14:15], v6 offset:512""")
    for i in range(4): a(f"v_lshlrev_b32 v{16+2*i}, 16, v{8+i}\nv_and_b32 v{17+2*i}, 0xffff0000, v{8+i}")
    a("s_waitcnt lgkmcnt(0)")
    for i in range(4): a(f"v_lshlrev_b32 v{24+2*i}, 16, v{12+i}\nv_and_b32 v{25+2*i}, 0xffff0000, v{12+i}")
    for i in range(8): a(f"v_add_f32 v{16+i}, v{16+i}, v{24+i}")
    for i in range(4): a(f"v_cvt_pk_bf16_f32 v{8+i}, v{16+2*i}, v{17+2*i}")
    for i in range(4): a(f"v_lshlrev_b32 v{16+2*i}, 16, v{8+i}\nv_and_b32 v{17+2*i}, 0xffff0000, v{8+i}")
    for i in range(4): a(f"s_lshl_b32 s{44+2*i}, s{84+i}, 16\ns_and_b32 s{45+2*i}, s{84+i}, 0xffff0000".replace("s44","s90").replace("s45","s91").replace("s46","s92").replace("s47","s93").replace("s48","s96").replace("s49","s97").replace("s50","s98").replace("s51","s99"))
    B2 = [90, 91, 92, 93, 96, 97, 98, 99]
    a("s_barrier")
    stamp(a, 3)
    for w in range(4):
        a(f"ds_read_b128 v[{32+8*w}:{35+8*w}], v7 offset:{w*PWV}\nds_read_b128 v[{36+8*w}:{39+8*w}], v7 offset:{w*PWV+128}")
    a("s_waitcnt lgkmcnt(4)")
    for i in range(8): a(f"v_add_f32 v{32+i}, v{32+i}, v{40+i}")
    a("s_waitcnt lgkmcnt(0)")
    for i in range(8): a(f"v_add_f32 v{48+i}, v{48+i}, v{56+i}")
    for i in range(8): a(f"v_add_f32 v{32+i}, v{32+i}, v{48+i}")
    for i in range(4): a(f"v_cvt_pk_bf16_f32 v{8+i}, v{32+2*i}, v{33+2*i}")
    for i in range(4): a(f"v_lshlrev_b32 v{32+2*i}, 16, v{8+i}\nv_and_b32 v{33+2*i}, 0xffff0000, v{8+i}")
    for i in range(8): a(f"v_add_f32 v{32+i}, s{B2[i]}, v{32+i}")
    for i in range(4): a(f"v_cvt_pk_bf16_f32 v{8+i}, v{32+2*i}, v{33+2*i}")
    for i in range(4): a(f"v_lshlrev_b32 v{32+2*i}, 16, v{8+i}\nv_and_b32 v{33+2*i}, 0xffff0000, v{8+i}")
    for i in range(8): a(f"v_add_f32 v{32+i}, v{32+i}, v{16+i}")
    for i in range(4): a(f"v_cvt_pk_bf16_f32 v{8+i}, v{32+2*i}, v{33+2*i}")
    a(f"buffer_store_dwordx4 v[8:11], v2, s[{SO}:{SO+3}], 0 offen")
    stamp(a, 4)
    if O.prof:
        a("s_waitcnt vmcnt(0)")
        stamp(a, 5)
        dump_stamps(a, 6, 12, SWS)
    a.label("Lend2")
    a.l = fix(a.l)
    return a.text()

HDR = open("parallel_sum__ssm_conv_s4d__mixer_channel_mlp__prompt.s.ref").read().split("; Override launch")[0]
def build(path, **kw):
    for k, v in kw.items(): setattr(O, k, v)
    O.profoff = 0
    c1 = kernel("k1_kernel", k1(), vgpr=256, sgpr=102)
    O.profoff = 0x40000
    c2 = kernel("k2_kernel", k2(), vgpr=256, sgpr=102)
    txt = module([("k1_kernel", 256, 512, LDS1), ("k2_kernel", 256, 512, LDS2)], [c1, c2], HDR)
    open(path, "w").write(txt)
if __name__ == "__main__":
    build("v1_dbg.s", dumpk=True, prof=True)
    build("v1.s", dumpk=False, prof=False)
```
